```python
import torch

def _softmax(x, axis=-1):
    return torch.softmax(x, dim=axis)
def _gelu(x):
    return torch.nn.functional.gelu(x, approximate="tanh")
def _silu(x):
    return torch.nn.functional.silu(x)
def _sigmoid(x):
    return torch.sigmoid(x)
def _layernorm(x, axis=-1, eps=1e-5):
    m = x.mean(dim=axis, keepdim=True)
    v = x.var(dim=axis, keepdim=True, unbiased=False)
    return (x - m) / torch.sqrt(v + eps)
def _scatter_add(tgt, idx, src, axis=0):
    return tgt.clone().index_add_(axis, idx, src)
def _segment_sum(src, seg, n):
    out = torch.zeros((n,) + src.shape[1:], dtype=src.dtype)
    return out.index_add_(0, seg, src)
def _pad(x, pw):
    flat = tuple(v for pair in reversed(pw) for v in pair)
    return torch.nn.functional.pad(x, flat)

kernel_name = 'standalone__instancenorm__sampling'

def setup_inputs():

    _w = (lambda a: (lambda t: t.to(torch.bfloat16) if t.is_floating_point() else t)(torch.as_tensor(a)))
    B, C, H, W = 64, 1024, 4, 32
    return {
        "x": _w(abs((lambda *s: torch.randn(*s, dtype=torch.bfloat16) * 0.05)(B, C, H, W))),
        "g": _w((lambda *s: torch.randn(*s, dtype=torch.bfloat16) * 0.05)(C) + 1.0),
        "b": _w((lambda *s: torch.randn(*s, dtype=torch.bfloat16) * 0.4)(C)),
    }

def reference(x, g, b):
    mu = x.mean(axis=(-2, -1), keepdims=True)
    var = ((x - mu) ** 2).mean(axis=(-2, -1), keepdims=True)
    xhat = (x - mu) / torch.sqrt(var + 1e-5)
    return xhat * g.reshape(1, -1, 1, 1) + b.reshape(1, -1, 1, 1)
```

```python
import argparse, re, struct

NAME = "standalone__instancenorm__sampling"
HEADER = """; Kernarg layout for this problem (48 bytes, ptrs only, base s[0:1]):
;   offset  40: d_ws      268435456 bytes workspace (unspecified values whenever your kernel or launch list starts; a list's later launches find what earlier ones wrote)
"""
def f32(x): return "0x%08x" % struct.unpack("<I", struct.pack("<f", x))[0]
lg = lambda x: x.bit_length() - 1

def regs_of(tok):
    tok = tok.strip().lstrip("-")
    m = re.fullmatch(r"v(\d+)", tok)
    if m: return {int(m.group(1))}
    m = re.fullmatch(r"v\[(\d+):(\d+)\]", tok)
    if m: return set(range(int(m.group(1)), int(m.group(2)) + 1))
    return set()

def parse(ins):
    ins = ins.split(";")[0].strip()
    op, _, rest = ins.partition(" ")
    toks = [t.strip() for t in rest.split(",")]
    toks = [t.split(" ")[0] for t in toks]
    return op, toks

def hazard_pad(lines):
    out = []
    hist = []
    pos = 0
    for l in lines:
        s = l.split(";")[0].strip()
        if not s or s.endswith(":") or s.startswith("."):
            out.append(l); continue
        op, toks = parse(s)
        need = 0
        isv = op.startswith("v_")
        if isv:
            w = regs_of(toks[0]); r = set()
            for t in toks[1:]: r |= regs_of(t)
            if op.startswith("v_fmac") or op.startswith("v_dot2c"): r |= w
            dpp = "_dpp" in op
            for kind, regs, p, pop in hist:
                d = pos - p - 1
                if kind == "valu" and dpp and regs & (r | (w if True else set())): need = max(need, 2 - d)
                if kind == "trans" and regs & r: need = max(need, 1 - d)
                if kind == "dot":
                    if op == pop:
                        ab = set()
                        for t in toks[1:3]: ab |= regs_of(t)
                        if regs & ab: need = max(need, 3 - d)
                    elif regs & (r | w): need = max(need, 3 - d)
                if kind == "store" and regs & w: need = max(need, 2 - d)
        elif op.startswith(("buffer_", "global_")):
            r = set()
            for t in toks: r |= regs_of(t)
            for kind, regs, p, pop in hist:
                d = pos - p - 1
                if kind == "dot" and regs & r: need = max(need, 3 - d)
                if kind == "trans" and regs & r: need = max(need, 1 - d)
                if kind == "store" and "load" in op and regs & regs_of(toks[0]): need = max(need, 1 - d)
        if need > 0:
            out.append(f"    s_nop {need-1}"); pos += need
        out.append(l)
        if isv:
            hist.append(("valu", w, pos, op))
            if op.startswith(("v_rsq", "v_rcp", "v_sqrt")): hist.append(("trans", w, pos, op))
            if op.startswith("v_dot2"): hist.append(("dot", w, pos, op))
        elif "store" in op:
            hist.append(("store", regs_of(toks[0]) if op.startswith("buffer") else regs_of(toks[1]), pos, op))
        if op == "s_nop": pos += int(toks[0]) + 1
        else: pos += 1
        hist = [h for h in hist if pos - h[2] < 8]
    return out

def gen(wpb=8, U=4, depth=2, lpr=8, ldf="nt", stf="sc1", mapping="sweep", alt=True, prio=False, numa=None, stf2=None, split=0, late=False):
    H = 16 // lpr
    ub = 1024 * H
    nwaves = (16 << 20) // (ub * U)
    nblk = nwaves // wpb
    depth = min(depth, U)
    L = []; a = lambda s: L.append("    " + s)
    head = [HEADER + f"; @launch grid=({nblk},1,1) block=({64*wpb},1,1) lds=0",
            '.amdgcn_target "amdgcn-amd-amdhsa--gfx950"', ".text", f".globl {NAME}_kernel", ".p2align 8",
            f".type {NAME}_kernel,@function", f"{NAME}_kernel:"]
    a("s_load_dwordx8 s[4:11], s[0:1], 0        ; x, g, b, out")
    wgb = wpb * ub
    SO = 24
    if mapping == "sweep":
        step = nblk * wgb
        assert step % (256 << 10) == 0
        a(f"s_cmp_ge_u32 s2, {nblk}")
        a(f"s_cbranch_scc1 L_end")
        if numa is not None:
            assert wgb == 8192
            a("s_lshr_b32 s3, s2, 2"); a("s_xor_b32 s3, s3, s2"); a("s_and_b32 s3, s3, 1"); a("s_mul_i32 s3, s3, 5"); a("s_xor_b32 s2, s2, s3")
            if step > (2 << 20):
                a("s_lshr_b32 s3, s2, 8"); a("s_and_b32 s3, s3, 1"); a("s_xor_b32 s2, s2, s3")
            if numa: a("s_xor_b32 s2, s2, 1")
        a(f"s_lshl_b32 s{SO}, s2, {lg(wgb)}")
        for t in range(1, U):
            if alt and step >= (4 << 20) and (t & 1):
                a(f"s_xor_b32 s{SO+t}, s{SO}, {hex(t*step + (1<<21))}")
            else:
                a(f"s_or_b32 s{SO+t}, s{SO}, {hex(t*step)}")
        samech = True
    else:
        raise NotImplementedError
    if lpr == 8:
        a("v_lshrrev_b32 v2, 3, v0")
        a("v_and_b32 v1, 7, v0")
        a("v_lshlrev_b32 v1, 4, v1")
        a("v_lshl_or_b32 v1, v2, 8, v1")
    else:
        a("v_lshrrev_b32 v2, 4, v0")
        a("v_lshlrev_b32 v1, 4, v0")
    a(f"s_lshr_b32 s3, s{SO}, 8")
    a("v_add_lshl_u32 v2, v2, s3, 1")
    a("v_and_b32 v2, 0x7fe, v2")
    a("v_mov_b32 v4, 0")
    a("v_mov_b32 v7, 0")
    a(f"v_mov_b32 v5, {f32(128e-5 / (2*lpr))}")
    a("s_mov_b32 s14, 0x1000000"); a("s_mov_b32 s15, 0x20000")
    a("s_mov_b32 s18, 0x1000000"); a("s_mov_b32 s19, 0x20000")
    a("s_mov_b32 s20, 0xbc00bc00                ; bf16 (-1/128,-1/128)")
    a("s_mov_b32 s21, 0x3f80                    ; bf16 (1,0)")
    a("s_mov_b32 s22, 0x3f800000                ; bf16 (0,1)")
    a("s_waitcnt lgkmcnt(0)")
    a("s_mov_b64 s[12:13], s[4:5]")
    a("s_mov_b64 s[16:17], s[10:11]")
    D0 = 10
    R = 4 * H
    raw = lambda t: D0 + R * (t % depth)
    W = D0 + R * depth
    O = W + 2 * R
    ops = []
    def ld(t):
        for h in range(H):
            r = raw(t) + 4 * h
            off = f" offset:{128*h}" if h else ""
            a(f"buffer_load_dwordx4 v[{r}:{r+3}], v1, s[12:15], s{SO+t} offen{off} {ldf}")
            ops.append(("l", t))
    ld(0)
    a("global_load_short_d16_hi v4, v2, s[6:7]"); ops.append(("g", 0))
    a("global_load_short_d16_hi v7, v2, s[8:9]"); ops.append(("g", 0))
    for t in range(1, depth): ld(t)
    if lpr == 8:
        dpps = ["quad_perm:[1,0,3,2]", "quad_perm:[2,3,0,1]", "row_half_mirror"]
    else:
        dpps = ["row_ror:8", "row_ror:4", "row_ror:2", "row_ror:1"]
    def wait(key):
        i = max(k for k, o in enumerate(ops) if o == key)
        a(f"s_waitcnt vmcnt({len(ops) - 1 - i})")
    for t in range(U):
        d = raw(t)
        wait(("l", t))
        for k in range(R):
            a(f"v_dot2_f32_bf16 v3, v{d+k}, s20, {'0' if k == 0 else 'v3'}")
        for p in dpps:
            a(f"v_add_f32_dpp v3, v3, v3 {p} row_mask:0xf bank_mask:0xf")
        for k in range(R):
            a(f"v_dot2_f32_bf16 v{W+2*k}, v{d+k}, s21, v3")
            a(f"v_dot2_f32_bf16 v{W+2*k+1}, v{d+k}, s22, v3")
        if t + depth < U and not late: ld(t + depth)
        for k in range(R):
            w = W + 2 * k
            if k == 0: a(f"v_pk_fma_f32 v[8:9], v[{w}:{w+1}], v[{w}:{w+1}], v[4:5] op_sel:[0,0,1] op_sel_hi:[1,1,1]")
            else: a(f"v_pk_fma_f32 v[8:9], v[{w}:{w+1}], v[{w}:{w+1}], v[8:9]")
        a("v_add_f32 v8, v8, v9")
        if t == 0:
            wait(("g", 0))
            a(f"v_mul_f32 v4, {f32(128 ** 0.5)}, v4      ; g*sqrt(128)")
        for p in dpps:
            a(f"v_add_f32_dpp v8, v8, v8 {p} row_mask:0xf bank_mask:0xf")
        a("v_rsq_f32 v8, v8")
        a("v_mul_f32 v6, v8, v4")
        o = O if (t + depth < U and not late) else d
        f = stf2 if (stf2 is not None and t >= split) else stf
        for h in range(H):
            for k in range(4 * h, 4 * h + 4):
                w = W + 2 * k
                a(f"v_pk_fma_f32 v[{w}:{w+1}], v[{w}:{w+1}], v[6:7], v[6:7] op_sel:[0,0,1] op_sel_hi:[1,0,1]")
            for k in range(4 * h, 4 * h + 4):
                w = W + 2 * k
                a(f"v_cvt_pk_bf16_f32 v{o+k}, v{w}, v{w+1}")
            off = f" offset:{128*h}" if h else ""
            a(f"buffer_store_dwordx4 v[{o+4*h}:{o+4*h+3}], v1, s[16:19], s{SO+t} offen{off} {f}")
            ops.append(("s", t))
        if t + depth < U and late: ld(t + depth)
    L = hazard_pad(L)
    L.append("L_end:"); L.append("    s_endpgm")
    nv = O + (R if depth < U and not late else 0)
    tail = ['.section .rodata,"a"', ".p2align 6", f".amdhsa_kernel {NAME}_kernel",
            f"  .amdhsa_next_free_vgpr {nv}", f"  .amdhsa_next_free_sgpr {SO+U}", f"  .amdhsa_accum_offset {(nv+3)//4*4}",
            "  .amdhsa_group_segment_fixed_size 0", "  .amdhsa_kernarg_size 48", "  .amdhsa_user_sgpr_count 2",
            "  .amdhsa_user_sgpr_kernarg_segment_ptr 1", "  .amdhsa_system_sgpr_workgroup_id_x 1",
            "  .amdhsa_float_denorm_mode_32 3", ".end_amdhsa_kernel"]
    return "\n".join(head + L + tail) + "\n"

if __name__ == "__main__":
    p = argparse.ArgumentParser()
    p.add_argument("-o", required=True)
    p.add_argument("--wpb", type=int, default=8); p.add_argument("--U", type=int, default=4)
    p.add_argument("--depth", type=int, default=2); p.add_argument("--lpr", type=int, default=8)
    p.add_argument("--ldf", default="nt"); p.add_argument("--stf", default="sc1")
    p.add_argument("--stf2", default=None); p.add_argument("--split", type=int, default=0)
    p.add_argument("--noalt", action="store_true"); p.add_argument("--late", action="store_true")
    p.add_argument("--numa", type=int, default=None)
    g = p.parse_args()
    open(g.o, "w").write(gen(g.wpb, g.U, g.depth, g.lpr, g.ldf, g.stf, "sweep", not g.noalt, numa=g.numa, stf2=g.stf2, split=g.split, late=g.late))
```

```python
import argparse, sys
sys.path.insert(0, "exp")
from gen2 import NAME, HEADER, f32, lg, hazard_pad

def gen(lpr=16, ldf="nt", stf="sc1", ndec=8, tbit=0, delay=2, sw=2, pbase=0xc00000, diag=False, align=12, deep=False, stflast=None):
    H = 16 // lpr
    wpb = 8 // H
    nblk = 512
    R = 4 * H
    L = []; a = lambda s: L.append("    " + s); lab = lambda s: L.append(s + ":")
    head = [HEADER + f"; @launch grid=({nblk},1,1) block=({64*wpb},1,1) lds=0",
            '.amdgcn_target "amdgcn-amd-amdhsa--gfx950"', ".text", f".globl {NAME}_kernel", f".p2align {align}",
            f".type {NAME}_kernel,@function", f"{NAME}_kernel:"]
    a("s_load_dwordx8 s[4:11], s[0:1], 0        ; x, g, b, out")
    a("s_load_dwordx2 s[30:31], s[0:1], 32      ; d_debug")
    a(f"s_cmpk_ge_u32 s2, {nblk}")
    a(f"s_cbranch_scc1 L_end")
    a("s_andn2_b32 s3, s2, 7")
    a("s_and_b32 s26, s2, 3")
    a("s_lshl1_add_u32 s3, s26, s3              ; 2*chunk")
    a("s_lshl_b32 s26, s3, 12")
    a("s_lshl_b32 s3, s3, 4")
    a(f"v_lshrrev_b32 v2, {lg(lpr)}, v0")
    if lpr == 16:
        a("v_lshlrev_b32 v1, 4, v0")
    else:
        a(f"v_and_b32 v1, {lpr-1}, v0")
        a("v_lshlrev_b32 v1, 4, v1")
        a("v_lshl_or_b32 v1, v2, 8, v1")
    a("v_add_lshl_u32 v2, v2, s3, 1")
    a("v_and_b32 v2, 0x7fe, v2")
    a("s_and_b32 s3, s2, 4"); a("s_lshl_b32 s3, s3, 19")
    a("s_or_b32 s24, s26, s3")
    a("s_mul_i32 s28, s2, 5")
    a("s_lshl_b32 s29, s2, 2"); a("s_andn2_b32 s29, 4, s29"); a("s_or_b32 s29, s29, 8")
    a("v_mov_b32 v4, 0")
    a("v_mov_b32 v7, 0")
    a(f"v_mov_b32 v5, {f32(128e-5 / (2*lpr))}")
    a("s_mov_b32 s14, 0x1000000"); a("s_mov_b32 s15, 0x20000")
    a("s_mov_b64 s[18:19], s[14:15]")
    a("s_mov_b32 s20, 0xbc00bc00                ; bf16 (-1/128,-1/128)")
    a("s_movk_i32 s21, 0x3f80                   ; bf16 (1,0)")
    a("s_mov_b32 s22, 1.0                       ; bf16 (0,1)")
    a("v_cmp_eq_u32 vcc, 0, v0")
    a(f"s_cmp_lt_u32 s2, {ndec}")
    a("s_cselect_b64 vcc, vcc, 0")
    D0 = 10
    W = D0 + R
    segb = lpr * 16
    def ld(so, d=D0):
        for h in range(H):
            r = d + 4 * h
            off = f" offset:{segb*h}" if h else ""
            a(f"buffer_load_dwordx4 v[{r}:{r+3}], v1, s[12:15], s{so} offen{off} {ldf}")
    a("s_cbranch_vccz L_plain")
    a(f"s_bfe_u32 s27, s2, {hex(0x10000 | tbit)}         ; type")
    a("s_lshl_b32 s34, s27, 13")
    a("s_lshl_b32 s3, s2, 8")
    a("s_add_u32 s34, s34, s3")
    a(f"s_or_b32 s34, s34, {hex(pbase)}")
    a("s_xor_b32 s35, s34, 0x2000")
    a("s_waitcnt lgkmcnt(0)")
    a("s_load_dword s34, s[4:5], s34")
    a("s_load_dwordx2 s[36:37], s[4:5], s35")
    a("s_branch L_go")
    lab("L_plain")
    a("s_waitcnt lgkmcnt(0)")
    lab("L_go")
    a("s_mov_b64 s[12:13], s[4:5]")
    ld(24)
    a("global_load_short_d16_hi v4, v2, s[6:7]")
    a("global_load_short_d16_hi v7, v2, s[8:9]")
    a("s_mov_b64 s[16:17], s[10:11]")
    a("s_cbranch_vccz L_novote")
    a("s_waitcnt lgkmcnt(2)")
    a("s_mov_b64 exec, vcc")
    a("v_mov_b32 v9, 0")
    a("s_getreg_b32 s3, hwreg(HW_REG_XCC_ID, 0, 2)")
    a("s_lshl2_add_u32 s27, s27, s3")
    a("s_sub_u32 s27, s27, s2")
    for _ in range(delay): a("s_nop 3")
    a("s_getreg_b32 s3, hwreg(HW_REG_IB_STS, 9, 1)")
    a("s_lshl2_add_u32 s27, s3, s27")
    a("s_and_b32 s27, s27, 7"); a("s_xor_b32 s27, s27, 12")
    if diag: a("s_lshl_b32 s3, s2, 4"); a("s_or_b32 s27, s27, s3")
    a("v_mov_b32 v8, s27")
    a("global_atomic_cmpswap v9, v[8:9], s[30:31] sc1")
    a("s_mov_b64 exec, -1")
    a("s_waitcnt vmcnt(1)")
    a("s_branch L_voted")
    lab("L_novote")
    a(f"s_waitcnt vmcnt(0)")
    lab("L_voted")
    a(f"v_mul_f32 v4, {f32(128 ** 0.5)}, v4      ; g*sqrt(128)")
    dpps = {16: ["row_ror:8", "row_ror:4", "row_ror:2", "row_ror:1"],
            8: ["quad_perm:[1,0,3,2]", "quad_perm:[2,3,0,1]", "row_half_mirror"]}[lpr]
    lab("L_loop")
    d = D0
    a(f"s_waitcnt vmcnt({H})")
    lab("L_body")
    for k in range(R):
        a(f"v_dot2_f32_bf16 v3, v{d+k}, s20, {'0' if k == 0 else 'v3'}")
    a("s_add_u32 s26, s26, 0x400000")
    for p in dpps:
        a(f"v_add_f32_dpp v3, v3, v3 {p} row_mask:0xf bank_mask:0xf")
    for k in range(R):
        a(f"v_dot2_f32_bf16 v{W+2*k}, v{d+k}, s21, v3")
        a(f"v_dot2_f32_bf16 v{W+2*k+1}, v{d+k}, s22, v3")
    a("s_waitcnt lgkmcnt(0)")
    lab("L_chk")
    a("s_cmp_eq_u32 s29, 0")
    a("s_cbranch_scc1 L_slow")
    a("s_add_u32 s25, s29, s28")
    a("s_and_b32 s25, s25, 4")
    a("s_lshl_b32 s25, s25, 19")
    a("s_or_b32 s23, s26, s25")
    a("s_cmp_lt_u32 s23, s14")
    a(f"s_cbranch_scc0 L_skip")
    ld(23)
    lab(f"L_skip")
    for k in range(R):
        w = W + 2 * k
        if k == 0: a(f"v_pk_fma_f32 v[8:9], v[{w}:{w+1}], v[{w}:{w+1}], v[4:5] op_sel:[0,0,1] op_sel_hi:[1,1,1]")
        else: a(f"v_pk_fma_f32 v[8:9], v[{w}:{w+1}], v[{w}:{w+1}], v[8:9]")
    a("v_add_f32 v8, v8, v9")
    for p in dpps:
        a(f"v_add_f32_dpp v8, v8, v8 {p} row_mask:0xf bank_mask:0xf")
    a("v_rsq_f32 v8, v8")
    a("v_mul_f32 v6, v8, v4")
    for h in range(H):
        for k in range(4 * h, 4 * h + 4):
            w = W + 2 * k
            a(f"v_pk_fma_f32 v[{w}:{w+1}], v[{w}:{w+1}], v[6:7], v[6:7] op_sel:[0,0,1] op_sel_hi:[1,0,1]")
        o = W + 8 * h
        for k in range(4):
            a(f"v_cvt_pk_bf16_f32 v{o+k}, v{o+2*k}, v{o+2*k+1}")
        off = f" offset:{segb*h}" if h else ""
        a(f"buffer_store_dwordx4 v[{o}:{o+3}], v1, s[16:19], s24 offen{off} {stf}")
    a(f"s_mov_b32 s24, s23")
    a("s_cbranch_scc0 L_end")
    a("s_lshr_b32 s3, s24, 22")
    a(f"s_cmp_lg_u32 s3, {sw-1}")
    a("s_cbranch_scc1 L_loop")
    a(f"s_waitcnt vmcnt({H})")
    a("s_load_dword s29, s[30:31], 0")
    a("s_movk_i32 s33, 32")
    a("s_branch L_body")
    lab("L_slow")
    a("v_mov_b32 v9, 0")
    if diag:
        a("v_mov_b32 v8, 1"); a("s_mov_b64 exec, 1")
        a("global_atomic_add v9, v8, s[30:31] offset:128 sc1"); a("s_mov_b64 exec, -1")
    a("s_sub_u32 s33, s33, 1")
    a("s_cbranch_scc0 L_slow2")
    a("v_mov_b32 v8, 8")
    a("s_mov_b64 exec, 1")
    a("global_atomic_cmpswap v9, v[8:9], s[30:31] sc1")
    a("s_mov_b64 exec, -1")
    a("s_waitcnt vmcnt(0)")
    lab("L_slow2")
    a("global_load_dword v8, v9, s[30:31] sc1")
    a("s_waitcnt vmcnt(0)")
    a("v_readfirstlane_b32 s29, v8")
    a("s_branch L_chk")
    L = hazard_pad(L)
    L.append("L_end:"); L.append("    s_endpgm")
    nv = W + 2 * R
    tail = ['.section .rodata,"a"', ".p2align 6", f".amdhsa_kernel {NAME}_kernel",
            f"  .amdhsa_next_free_vgpr {nv}", f"  .amdhsa_next_free_sgpr 38", f"  .amdhsa_accum_offset {(nv+3)//4*4}",
            "  .amdhsa_group_segment_fixed_size 0", "  .amdhsa_kernarg_size 48", "  .amdhsa_user_sgpr_count 2",
            "  .amdhsa_user_sgpr_kernarg_segment_ptr 1", "  .amdhsa_system_sgpr_workgroup_id_x 1",
            "  .amdhsa_float_denorm_mode_32 3", ".end_amdhsa_kernel"]
    return "\n".join(head + L + tail) + "\n"

if __name__ == "__main__":
    p = argparse.ArgumentParser()
    p.add_argument("-o", required=True)
    p.add_argument("--lpr", type=int, default=16)
    p.add_argument("--ldf", default="nt"); p.add_argument("--stf", default="sc1")
    p.add_argument("--ndec", type=int, default=8); p.add_argument("--tbit", type=int, default=0)
    p.add_argument("--sw", type=int, default=2); p.add_argument("--delay", type=int, default=2)
    p.add_argument("--pbase", type=lambda x: int(x, 0), default=0xc00000)
    p.add_argument("--diag", action="store_true")
    g = p.parse_args()
    open(g.o, "w").write(gen(g.lpr, g.ldf, g.stf, g.ndec, g.tbit, g.delay, g.sw, g.pbase, g.diag))
```
